```python
import torch

def _softmax(x, axis=-1):
    return torch.softmax(x, dim=axis)
def _gelu(x):
    return torch.nn.functional.gelu(x, approximate="tanh")
def _silu(x):
    return torch.nn.functional.silu(x)
def _sigmoid(x):
    return torch.sigmoid(x)
def _layernorm(x, axis=-1, eps=1e-5):
    m = x.mean(dim=axis, keepdim=True)
    v = x.var(dim=axis, keepdim=True, unbiased=False)
    return (x - m) / torch.sqrt(v + eps)
def _scatter_add(tgt, idx, src, axis=0):
    return tgt.clone().index_add_(axis, idx, src)
def _segment_sum(src, seg, n):
    out = torch.zeros((n,) + src.shape[1:], dtype=src.dtype)
    return out.index_add_(0, seg, src)
def _pad(x, pw):
    flat = tuple(v for pair in reversed(pw) for v in pair)
    return torch.nn.functional.pad(x, flat)

kernel_name = 'interleave_layers__sliding_local_dilated__sliding_local_dilated__prompt'

def setup_inputs():

    _w = (lambda a: (lambda t: t.to(torch.bfloat16) if t.is_floating_point() else t)(torch.as_tensor(a)))
    def _A_setup():
        B, S, D = 1, 2048, 512
        return {
            "x": _w((lambda *s: torch.randn(*s, dtype=torch.bfloat16) * 0.05)(B, S, D)),
            "wqkv": _w((lambda *s: torch.randn(*s, dtype=torch.bfloat16) * 0.05)(D, 3 * D)),
            "wo": _w((lambda *s: torch.randn(*s, dtype=torch.bfloat16) * 0.05)(D, D)),
        }
    _A_in = _A_setup()

    def _B_setup():
        B, S, D = 1, 2048, 512
        return {
            "x": _w((lambda *s: torch.randn(*s, dtype=torch.bfloat16) * 0.05)(B, S, D)),
            "wqkv": _w((lambda *s: torch.randn(*s, dtype=torch.bfloat16) * 0.05)(D, 3 * D)),
            "wo": _w((lambda *s: torch.randn(*s, dtype=torch.bfloat16) * 0.05)(D, D)),
        }
    _B_in = _B_setup()

    return {
        "A_x": _A_in["x"],
        "A_wqkv": _A_in["wqkv"],
        "A_wo": _A_in["wo"],
        "B_x": _B_in["x"],
        "B_wqkv": _B_in["wqkv"],
        "B_wo": _B_in["wo"],
    }

def reference(A_x, A_wqkv, A_wo, B_x, B_wqkv, B_wo):
    def _A_ref(x, wqkv, wo):
        B, S, D = x.shape
        H = 32; Dh = D // H
        W, dil = 8, 2
        qkv = (lambda x, *d: x.permute(*d))((x @ wqkv).reshape(B, S, 3, H, Dh), 2, 0, 3, 1, 4)
        q, k, v = qkv[0], qkv[1], qkv[2]
        scale = Dh ** -0.5
        pos = torch.arange(S)
        off = torch.arange(W) * dil
        idx = pos[:, None] - off[None, :]
        mask = idx >= 0
        idx_c = torch.where(mask, idx, 0).reshape(-1)
        kg = k[:, :, idx_c, :].reshape(B, H, S, W, Dh)
        vg = v[:, :, idx_c, :].reshape(B, H, S, W, Dh)
        logits = torch.einsum("bhsd,bhswd->bhsw", q, kg) * scale
        logits = torch.where(mask[None, None, :, :], logits, -1e9)
        attn = _softmax(logits, axis=-1)
        o = torch.einsum("bhsw,bhswd->bhsd", attn, vg)
        return (lambda x, *d: x.permute(*d))(o, 0, 2, 1, 3).reshape(B, S, D) @ wo

    def _B_ref(x, wqkv, wo):
        B, S, D = x.shape
        H = 32; Dh = D // H
        W, dil = 8, 2
        qkv = (lambda x, *d: x.permute(*d))((x @ wqkv).reshape(B, S, 3, H, Dh), 2, 0, 3, 1, 4)
        q, k, v = qkv[0], qkv[1], qkv[2]
        scale = Dh ** -0.5
        pos = torch.arange(S)
        off = torch.arange(W) * dil
        idx = pos[:, None] - off[None, :]
        mask = idx >= 0
        idx_c = torch.where(mask, idx, 0).reshape(-1)
        kg = k[:, :, idx_c, :].reshape(B, H, S, W, Dh)
        vg = v[:, :, idx_c, :].reshape(B, H, S, W, Dh)
        logits = torch.einsum("bhsd,bhswd->bhsw", q, kg) * scale
        logits = torch.where(mask[None, None, :, :], logits, -1e9)
        attn = _softmax(logits, axis=-1)
        o = torch.einsum("bhsw,bhswd->bhsd", attn, vg)
        return (lambda x, *d: x.permute(*d))(o, 0, 2, 1, 3).reshape(B, S, D) @ wo

    x = A_x
    x = x + _A_ref(_layernorm(x, axis=-1), A_wqkv, A_wo)
    x = x + _B_ref(_layernorm(x, axis=-1), B_wqkv, B_wo)
    x = x + _A_ref(_layernorm(x, axis=-1), A_wqkv, A_wo)
    x = x + _B_ref(_layernorm(x, axis=-1), B_wqkv, B_wo)
    return x
```

```python
import re, copy

REG_RE = re.compile(r'^(-|abs\()?([vas])(?:\[(\d+):(\d+)\]|(\d+))\)?$')

def regs_of(op):
    op = op.strip()
    if op in ('vcc', 'exec', 'm0', 'scc'):
        return [op]
    if op in ('vcc_lo', 'vcc_hi'):
        return ['vcc']
    m = REG_RE.match(op)
    if not m:
        return []
    f = m.group(2)
    if m.group(3) is not None:
        return [(f, i) for i in range(int(m.group(3)), int(m.group(4)) + 1)]
    return [(f, int(m.group(5)))]

TRANS = ('v_exp_f32', 'v_log_f32', 'v_rcp_f32', 'v_rsq_f32', 'v_sqrt_f32')

class Ins:
    __slots__ = ('text', 'kind', 'w', 'r', 'rc', 'rab', 'tag', 'wide', 'states', 'waits', 'cost', 'mn')
    def __init__(self, text, tag=None):
        self.text = text
        self.tag = tag
        self.w = set(); self.r = set(); self.rc = set(); self.rab = set()
        self.wide = False
        self.states = 1
        self.waits = None
        self.cost = 1
        t = text.split(';')[0].strip()
        if t.endswith(':'):
            self.kind = 'label'; self.states = 0; self.mn = ''; self.cost = 0
            return
        parts = t.split(None, 1)
        mn = parts[0]; self.mn = mn
        rest = parts[1] if len(parts) > 1 else ''
        ops = []; cur = ''; depth = 0
        for ch in rest:
            if ch in '[(': depth += 1
            if ch in '])': depth -= 1
            if ch == ',' and depth == 0:
                ops.append(cur.strip()); cur = ''
            else:
                cur += ch
        if cur.strip(): ops.append(cur.strip())
        mods = ''
        if ops:
            sp = ops[-1].split(None, 1)
            if len(sp) > 1:
                ops[-1] = sp[0]; mods = sp[1]
        R = lambda o: set(regs_of(o))
        if mn.startswith('v_mfma'):
            self.kind = 'mfma'; self.cost = 2
            self.w = R(ops[0]); self.rab = R(ops[1]) | R(ops[2]); self.rc = R(ops[3])
            self.r = self.rab | self.rc
        elif mn.startswith('v_permlane'):
            self.kind = 'permlane'; self.cost = 2
            self.w = R(ops[0]) | R(ops[1]); self.r = set(self.w)
        elif mn.startswith('v_dot'):
            self.kind = 'dot'
            self.w = R(ops[0])
            for o in ops[1:]: self.r |= R(o)
            if 'dot2c' in mn: self.r |= self.w
            self.rc = R(ops[3]) if len(ops) > 3 else set(self.w)
            self.rab = R(ops[1]) | R(ops[2])
        elif mn.startswith('v_readfirstlane') or mn.startswith('v_readlane'):
            self.kind = 'rdlane'
            self.w = R(ops[0])
            for o in ops[1:]: self.r |= R(o)
        elif mn.startswith('v_'):
            self.kind = 'trans' if mn.replace('_e32', '').replace('_e64', '') in TRANS else 'valu'
            if self.kind == 'trans': self.cost = 2
            self.w = R(ops[0])
            for o in ops[1:]: self.r |= R(o)
            if mn.startswith('v_fmac') or mn.startswith('v_pk_fmac'): self.r |= self.w
            if 'row_' in mods or 'quad_perm' in mods: self.kind = 'dpp'
        elif mn.startswith('ds_read') or mn.startswith('ds_bpermute') or mn.startswith('ds_swizzle'):
            self.kind = 'dsr'
            self.w = R(ops[0])
            for o in ops[1:]: self.r |= R(o)
        elif mn.startswith('ds_write'):
            self.kind = 'dsw'
            for o in ops: self.r |= R(o)
        elif mn.startswith('buffer_load'):
            if re.search(r'\blds\b', mods):
                self.kind = 'dma'
                for o in ops: self.r |= R(o)
                self.r.add('m0')
            else:
                self.kind = 'vld'
                self.w = R(ops[0])
                for o in ops[1:]: self.r |= R(o)
        elif mn.startswith('buffer_store') or mn.startswith('buffer_atomic'):
            self.kind = 'vst'
            for o in ops: self.r |= R(o)
            self.wide = mn.endswith('x4') or mn.endswith('x3')
            if self.wide: self.rc = R(ops[0])
        elif mn in ('buffer_wbl2', 'buffer_inv'):
            self.kind = 'vst'
        elif mn == 's_nop':
            self.kind = 'nop'; self.states = int(ops[0], 0) + 1; self.cost = self.states
        elif mn == 's_waitcnt':
            self.kind = 'wait'
        elif mn == 's_barrier':
            self.kind = 'barrier'
        elif mn.startswith('s_cbranch') or mn == 's_branch' or mn == 's_endpgm' or mn.startswith('s_setpc') :
            self.kind = 'branch'
        elif mn.startswith('s_load') or mn.startswith('s_memtime') or mn.startswith('s_memrealtime'):
            self.kind = 'smem'
            self.w = R(ops[0])
            for o in ops[1:]: self.r |= R(o)
        elif mn.startswith('s_cmp') or mn in ('s_setprio', 's_sleep', 's_bitcmp0_b32', 's_bitcmp1_b32'):
            self.kind = 'salu'
            for o in ops: self.r |= R(o)
        elif mn.startswith('s_'):
            self.kind = 'salu'
            self.w = R(ops[0])
            for o in ops[1:]: self.r |= R(o)
        elif mn == 'WAITTAG':
            self.kind = 'waittag'; self.cost = 1
        else:
            raise ValueError('unknown instr: ' + text)

VALU_KINDS = ('valu', 'trans', 'permlane', 'dot', 'rdlane', 'dpp')

def is_sg(x):
    return x == 'vcc' or (isinstance(x, tuple) and x[0] == 's')

def need_states(p, c):
    n = 0
    pv = p.kind in VALU_KINDS
    cv = c.kind in VALU_KINDS
    mem = c.kind in ('dsr', 'dsw', 'vld', 'vst', 'dma')
    if pv:
        vw = {x for x in p.w if not is_sg(x)}
        sw = {x for x in p.w if is_sg(x)}
        if c.kind == 'mfma' and (vw & c.r): n = max(n, 2)
        if c.kind in ('permlane', 'dpp') and (vw & c.r): n = max(n, 2)
        if c.kind == 'rdlane' and (vw & c.r): n = max(n, 1)
        if p.kind == 'trans' and cv and (vw & c.r): n = max(n, 1)
        if sw:
            if cv and (sw & c.r): n = max(n, 4 if c.kind == 'rdlane' else 2)
            if c.kind in ('vld', 'vst', 'dma') and (sw & c.r): n = max(n, 5)
            if c.kind in ('salu', 'smem') and (sw & c.r): n = max(n, 1)
        if p.kind == 'dot':
            if c.kind == 'dot' and c.mn == p.mn:
                if vw & c.rab: n = max(n, 3)
            elif (vw & (c.r | c.w)): n = max(n, 3)
    if p.kind == 'mfma':
        if c.kind == 'mfma':
            if p.w & c.rab: n = max(n, 8)
            if p.w & c.rc:
                if not (p.w == c.rc): n = max(n, 6)
            if (p.w & c.w) and not (p.w & c.rc): n = max(n, 6)
        elif cv:
            if p.w & (c.r | c.w): n = max(n, 8)
            if p.rc & c.w: n = max(n, 3)
        elif mem:
            if p.w & (c.r | c.w): n = max(n, 8)
            if p.rc & c.w: n = max(n, 3)
    if p.kind == 'salu' and 'm0' in p.w and c.kind == 'dma': n = max(n, 1)
    if p.kind == 'vst' and p.wide and (p.rc & c.w): n = max(n, 2)
    return n

class State:
    def __init__(self):
        self.hist = []
        self.alt = []
        self.vm = []
        self.lg = []
        self.smem = set()
    def clone(self):
        s = State(); s.hist = list(self.hist); s.alt = list(self.alt); s.vm = list(self.vm); s.lg = list(self.lg); s.smem = set(self.smem)
        return s

class Asm:
    def __init__(self):
        self.lines = []
        self.st = State()
        self.cond = 0
        self.nslots = 0
    def _raw(self, ins):
        self.lines.append(ins.text if ins.kind == 'label' else '    ' + ins.text)
        self.st.hist.append(ins)
        if len(self.st.hist) > 24: self.st.hist.pop(0)
        if self.cond == 0:
            self.st.alt.append(ins)
            if len(self.st.alt) > 24: self.st.alt.pop(0)
        self.nslots += ins.cost
    def nops_needed(self, c):
        need = 0
        for h in ((self.st.hist, self.st.alt) if self.cond == 0 else (self.st.hist,)):
            d = 0
            for p in reversed(h):
                n = need_states(p, c)
                if n - d > need: need = n - d
                d += p.states
                if d >= 10: break
        return need
    def _count_after(self, q, idx):
        return sum(1 for e in q[idx + 1:] if e[2] == 0 or e[2] == self.cond)
    def waits_needed(self, c):
        touched = c.r | c.w
        vmn = None; lgn = None
        tags = c.waits or ()
        for i, e in enumerate(self.st.vm):
            if (e[0] & touched) or (e[1] is not None and e[1] in tags):
                vmn = (i, self._count_after(self.st.vm, i))
        for i, e in enumerate(self.st.lg):
            if (e[0] & touched) or (e[1] is not None and e[1] in tags):
                lgn = (i, self._count_after(self.st.lg, i))
        if self.st.smem & touched:
            lgn = (len(self.st.lg) - 1, 0)
        elif lgn is not None and self.st.smem:
            lgn = (len(self.st.lg) - 1, 0)
        return vmn, lgn
    def _emit_wait(self, vmn, lgn):
        t = []
        if vmn is not None:
            n = min(vmn[1], 63)
            t.append('vmcnt(%d)' % n)
            self._retire('vm', n)
        if lgn is not None:
            n = min(lgn[1], 14)
            t.append('lgkmcnt(%d)' % n)
            self._retire('lg', n)
            if n == 0: self.st.smem = set()
        self._raw(Ins('s_waitcnt ' + ' '.join(t)))
    def _retire(self, which, n):
        q = getattr(self.st, which)
        keep = []
        for i, e in enumerate(q):
            if self._count_after(q, i) >= n: continue
            keep.append(e)
        setattr(self.st, which, keep)
    def emit(self, x, tag=None):
        ins = x if isinstance(x, Ins) else Ins(x, tag)
        if ins.kind == 'wait':
            m = re.search(r'vmcnt\((\d+)\)', ins.text)
            if m: self._retire('vm', int(m.group(1)))
            m = re.search(r'lgkmcnt\((\d+)\)', ins.text)
            if m:
                self._retire('lg', int(m.group(1)))
                if int(m.group(1)) == 0: self.st.smem = set()
            self._raw(ins); return
        vmn, lgn = self.waits_needed(ins)
        if vmn is not None or lgn is not None:
            self._emit_wait(vmn, lgn)
        if ins.kind == 'waittag':
            return
        n = self.nops_needed(ins)
        if n > 0:
            self._raw(Ins('s_nop %d' % (n - 1)))
        self._raw(ins)
        if ins.kind in ('vld', 'vst', 'dma'):
            self.st.vm.append((set(ins.w), ins.tag, self.cond))
        elif ins.kind in ('dsr', 'dsw'):
            self.st.lg.append((set(ins.w), ins.tag, self.cond))
        elif ins.kind == 'smem':
            self.st.smem |= ins.w
    def __call__(self, x, tag=None):
        if isinstance(x, (list, tuple)):
            for i in x: self.emit(i)
        elif isinstance(x, str) and '\n' in x:
            for l in x.split('\n'):
                if l.split(';')[0].strip(): self.emit(l.strip())
        else:
            self.emit(x, tag)
    def comment(self, t):
        self.lines.append('    ; ' + t)
    def fence(self):
        need = 0
        for h in (self.st.hist, self.st.alt):
            d = 0
            for p in reversed(h):
                n = 8 if p.kind == 'mfma' else (5 if p.kind in VALU_KINDS else (2 if p.kind in ('vst', 'salu') else 0))
                need = max(need, n - d)
                d += p.states
                if d >= 10: break
        if need > 0: self._raw(Ins('s_nop %d' % (need - 1)))
    _cid = 0
    def begin_cond(self):
        Asm._cid += 1
        self._saved = (list(self.st.vm), list(self.st.lg), set(self.st.smem))
        self.cond = Asm._cid
    def end_cond(self):
        vm0, lg0, sm0 = self._saved
        self.st.vm = vm0 + [e for e in self.st.vm if e[2] == self.cond]
        self.st.lg = lg0 + [e for e in self.st.lg if e[2] == self.cond]
        self.st.smem |= sm0
        self.cond = 0
    def interleave(self, main, fill, per=None, minper=1.5):
        main = [m if (callable(m) or isinstance(m, Ins)) else Ins(m) for m in main]
        fill = [f if isinstance(f, Ins) else Ins(f) for f in fill]
        nm = sum(1 for m in main if not callable(m) and m.kind == 'mfma')
        if per is None:
            tot = sum(f.cost for f in fill if f.kind not in ('mfma', 'delay'))
            tot += sum(m.cost for m in main if not callable(m) and m.kind != 'mfma') * 1.5
            nmf = sum(1 for f in fill if f.kind == 'mfma')
            per = max(minper, 1.12 * tot / max(1, nm + nmf))
        budget = 0.0
        last_fill_slot = self.nslots
        for m in main:
            if callable(m):
                m(); continue
            n0 = self.nslots
            self.emit(m)
            if m.kind == 'mfma':
                budget = min(budget, 0.99) + per - (self.nslots - n0 - 2)
            else:
                budget -= (self.nslots - n0)
                continue
            while fill and budget >= 1:
                f = fill[0]
                if f.kind == 'delay':
                    if self.nslots - last_fill_slot >= f.states:
                        fill.pop(0); continue
                    break
                if f.kind != 'waittag' and self.nops_needed(f) > 0: break
                n0 = self.nslots
                self.emit(fill.pop(0))
                last_fill_slot = self.nslots
                used = self.nslots - n0
                if f.kind == 'mfma':
                    budget = min(budget, 0.99) + per - (used - 2)
                else:
                    budget -= used
        return fill
    def drain(self, fill):
        for f in fill:
            f = f if isinstance(f, Ins) else Ins(f)
            if f.kind == 'delay': continue
            self.emit(f)

def delay(n):
    i = Ins('WAITTAG'); i.kind = 'delay'; i.states = n; i.cost = 0; return i

def waittag(*tags):
    i = Ins('WAITTAG'); i.waits = tuple(tags); return i

def T(text, tag):
    return Ins(text, tag)
```

```python
import sys, os
sys.path.insert(0, os.path.dirname(os.path.abspath(__file__)))
from asmlib import *

NAME = 'interleave_layers__sliding_local_dilated__sliding_local_dilated__prompt'
OPT = dict(stamps=False, force_safe=False, xmap=False, dump=None)
for a in sys.argv[2:]:
    k, _, v = a.partition('=')
    OPT[k] = v if v else True

LDS_X = 0
LDS_Y = 81920
LDS_MISC = 155648
MISC_CS = 1024
LDS_TOTAL = 163840
WS_O = 0
WS_STAT = 2 << 20
WS_HX = 3 << 20
WS_HST = 5 << 20
WS_FLAG = 6 << 20
WS_STAMP = 7 << 20
WS_SIZE = 8 << 20
def srd(n): return 's[%d:%d]' % (n, n + 3)
SX0, SWQA, SWOA, SWQB, SWOB, SOUT, SDBG, SWS, SWO, SOUTF, SOUTS, SWSF, SWSS, SXS = 8, 12, 16, 20, 24, 28, 32, 36, 40, 44, 48, 52, 56, 4
sOWN = [60, 62, 64, 66]
sVAL = [92, 94, 96, 98]
sW, sJ, sCL, sROW, sLAYER, sSPIN = 's68', 's69', 's70', 's71', 's72', 's73'
sT = ['s74', 's75', 's76', 's77', 's78', 's79']
sM0X, sM0W, sFLG, sFLGN, sHAL, sHALN, sHST, sHSTN = 's80', 's81', 's82', 's83', 's84', 's85', 's86', 's87'
sOB = ['s88', 's89', 's90', 's91']
sST, sBLK, sSKIPH, sFLW = 's100', 's101', 's3', 's2'
def sp(n): return 's[%d:%d]' % (n, n + 1)
def v(n, k=1): return 'v%d' % n if k == 1 else 'v[%d:%d]' % (n, n + k - 1)
XRES = 0
vXE, vXO, vDX0, vDX1, vDW0, vDW1 = 16, 17, 18, 19, 20, 21
vWT = [22, 23, 24, 25]
vOst, vOld, vXst, vSTst, vSTld, vFl, vS1, vS2 = 26, 27, 28, 29, 30, 31, 32, 33
ACC = [34, 46]
XR = 58
CSQ, CSK, CSV, CQ0 = 74, 78, 82, 83
CM, ONES, AM = 84, 88, 92
VP = 94
K0, KA, KB = 100, 102, 104
Q0, QC = 106, 108
RS4, NM4, RS1 = 110, 114, 118
CQ = 120
HST = 122
ST = 94
TMP = [121, 126, 127]
BIG = 0xf149f2ca
CEXP = 0x3eb8aa3b
SPIN_LIMIT = 1 << 18

def wfrag(bank, part, ks):
    idx = (ks * 3 + part) * 4
    if bank == 0: return 'a', idx
    if idx < 64: return 'a', 192 + idx
    return 'v', 128 + idx - 64
def wreg(bank, part, ks, lo=0, n=4):
    f, i = wfrag(bank, part, ks)
    return '%s[%d:%d]' % (f, i + lo, i + lo + n - 1)

A = Asm()
_lab = [0]
def label(p):
    _lab[0] += 1
    return 'L_%s_%d' % (p, _lab[0])

stamp_idx = [0]
STAMP_NAMES = []
def stamp(name):
    if not OPT['stamps']: return
    raise NotImplementedError

def poll(a, vtmp, vaddr, soff, imm, expect, first_loaded=False):
    lp, dn = label('poll'), label('pdone')
    a('s_mov_b32 %s, 0' % sSPIN)
    if first_loaded:
        ck = label('pck')
        a('s_branch %s' % ck)
    a(lp + ':')
    a('buffer_load_dword %s, %s, %s, %s offen offset:%d sc1' % (v(vtmp), v(vaddr), srd(SWS), soff, imm))
    if first_loaded: a(ck + ':')
    a('s_waitcnt vmcnt(0)')
    a('v_cmp_gt_u32 vcc, %s, %s' % (expect, v(vtmp)))
    a('s_cbranch_vccz %s' % dn)
    a('s_add_u32 %s, %s, 1' % (sSPIN, sSPIN))
    a('s_cmp_lt_u32 %s, %d' % (sSPIN, SPIN_LIMIT))
    a('s_cbranch_scc1 %s' % lp)
    a('s_endpgm')
    a(dn + ':')

def st2(op, data, vaddr, which, soff, imm=0):
    f, s = (SWSF, SWSS) if which == 'ws' else (SOUTF, SOUTS)
    mode = 'offen ' if vaddr != 'off' else ''
    o = 'offset:%d' % imm
    return ['%s %s, %s, %s, %s %s%s' % (op, data, vaddr, srd(f), soff, mode, o),
            '%s %s, %s, %s, %s %s%s sc1' % (op, data, vaddr, srd(s), soff, mode, o)]

def xdma(tile, srdn, soff, tag):
    out = []
    for e in range(2):
        for rg in range(2):
            out.append('s_add_u32 m0, %s, %d' % (sM0X, LDS_X + tile * 16384 + e * 1920 + rg * 1024))
            out.append(T('buffer_load_dwordx4 %s, %s, %s offen offset:%d sc1 lds' % (v(vDX1 if rg else vDX0), srd(srdn), soff, e * 128), tag))
    return out

def stats_final(p, t0, t1, waddr, o0, o1):
    s, q = p, p + 1
    L = []
    L += ['v_add_f32 %s, %s, %s' % (v(s), v(s), v(p + 2)),
          'v_add_f32 %s, %s, %s' % (v(q), v(q), v(p + 3)),
          'v_permlane32_swap_b32 %s, %s' % (v(s), v(q)),
          'v_add_f32 %s, %s, %s' % (v(s), v(s), v(q)),
          'v_mov_b32 %s, %s' % (v(q), v(s)),
          'v_permlane16_swap_b32 %s, %s' % (v(q), v(s)),
          'v_add_f32 %s, %s, %s' % (v(s), v(s), v(q)),
          'v_mul_f32 %s, 0x3b000000, %s' % (v(s), v(s)),
          'v_mov_b32 %s, %s' % (v(q), v(s)),
          'v_permlane32_swap_b32 %s, %s' % (v(s), v(q)),
          'v_fma_f32 %s, -%s, %s, %s' % (v(q), v(s), v(s), v(q)),
          'v_max_f32 %s, 0, %s' % (v(q), v(q)),
          'v_cvt_pk_bf16_f32 %s, %s, %s' % (v(q), v(s), v(q)),
          'v_lshlrev_b32 %s, 16, %s' % (v(s), v(q)),
          'v_and_b32 %s, 0xffff0000, %s' % (v(q), v(q)),
          'v_add_f32 %s, 0x3727c5ac, %s' % (v(q), v(q)),
          'v_cvt_pk_bf16_f32 %s, %s, %s' % (v(q), v(q), v(q)),
          'v_and_b32 %s, 0xffff0000, %s' % (v(q), v(q)),
          'v_sqrt_f32 %s, %s' % (v(q), v(q)),
          'v_xor_b32 %s, 0x80000000, %s' % (v(s), v(s)),
          'v_cvt_pk_bf16_f32 %s, %s, %s' % (v(q), v(q), v(q)),
          'v_and_b32 %s, 0xffff0000, %s' % (v(q), v(q)),
          'v_rcp_f32 %s, %s' % (v(q), v(q)),
          's_nop 0',
          T('ds_write2_b32 %s, %s, %s offset0:%d offset1:%d' % (v(waddr), v(q), v(s), o0, o1), 'statw')]
    return L

def P_reads(t):
    return ['ds_read2_b32 %s, %s offset0:%d offset1:%d' % (v(RS1, 2), v(vS1), t * 16, 80 + t * 16),
            'ds_read_b128 %s, %s offset:%d' % (v(RS4, 4), v(vS2), t * 64),
            'ds_read_b128 %s, %s offset:%d' % (v(NM4, 4), v(vS2), 320 + t * 64)]

KSLOT = {0: K0, 1: KA, 2: KB, 3: KA, 4: KB}
VSLOT = {0: VP, 1: VP + 2, 2: VP + 4, 3: VP + 2, 4: VP + 2}
def P_code(t):
    a = ACC[t & 1]
    rs, nm = RS1, RS1 + 1
    L = []
    if t != 4:
        for r in range(4): L.append('v_fma_f32 %s, %s, %s, %s' % (v(a + r), v(nm), v(CSQ + r), v(a + r)))
    for r in range(4): L.append('v_fma_f32 %s, %s, %s, %s' % (v(a + 4 + r), v(nm), v(CSK + r), v(a + 4 + r)))
    if t != 4:
        qd = Q0 if t == 0 else QC
        L.append('v_cvt_pk_bf16_f32 %s, %s, %s' % (v(qd), v(a), v(a + 1)))
        L.append('v_cvt_pk_bf16_f32 %s, %s, %s' % (v(qd + 1), v(a + 2), v(a + 3)))
    for r in range(4): L.append('v_mul_f32 %s, %s, %s' % (v(a + 4 + r), v(rs), v(a + 4 + r)))
    if t != 4:
        L.append('v_mul_f32 %s, 0x%x, %s' % (v(CQ0 if t == 0 else CQ), CEXP, v(rs)))
    kd = KSLOT[t]
    L.append('v_cvt_pk_bf16_f32 %s, %s, %s' % (v(kd), v(a + 4), v(a + 5)))
    L.append('v_cvt_pk_bf16_f32 %s, %s, %s' % (v(kd + 1), v(a + 6), v(a + 7)))
    for r in range(4): L.append('v_fma_f32 %s, %s, %s, %s' % (v(a + 8 + r), v(NM4 + r), v(CSV), v(a + 8 + r)))
    for r in range(4): L.append('v_mul_f32 %s, %s, %s' % (v(a + 8 + r), v(RS4 + r), v(a + 8 + r)))
    vd = VSLOT[t]
    L.append('v_cvt_pk_bf16_f32 %s, %s, %s' % (v(vd), v(a + 8), v(a + 9)))
    L.append('v_cvt_pk_bf16_f32 %s, %s, %s' % (v(vd + 1), v(a + 10), v(a + 11)))
    return L

def A_code(t, a):
    prev = 4 if t == 0 else t - 1
    q = Q0 if t == 0 else QC
    cq = CQ0 if t == 0 else CQ
    L = []
    L.append('v_mfma_f32_16x16x16_bf16 %s, %s, %s, %s' % (v(a, 4), v(KSLOT[t], 2), v(q, 2), v(CM, 4)))
    L.append('v_mfma_f32_16x16x16_bf16 %s, %s, %s, %s' % (v(a + 4, 4), v(KSLOT[prev], 2), v(q, 2), v(CM, 4)))
    for r in range(4): L.append('v_cndmask_b32 %s, %s, %s, %s' % (v(a + r), v(a + 4 + r), v(a + r), sp(sOWN[r])))
    m, u = a + 4, a + 5
    L += ['v_max3_f32 %s, %s, %s, %s' % (v(m), v(a), v(a + 1), v(a + 2)),
          'v_max_f32 %s, %s, %s' % (v(m), v(m), v(a + 3)),
          'v_mov_b32 %s, %s' % (v(u), v(m)),
          'v_permlane32_swap_b32 %s, %s' % (v(u), v(m)),
          'v_max_f32 %s, %s, %s' % (v(m), v(m), v(u)),
          'v_mov_b32 %s, %s' % (v(u), v(m)),
          'v_permlane16_swap_b32 %s, %s' % (v(u), v(m)),
          'v_max_f32 %s, %s, %s' % (v(m), v(m), v(u)),
          'v_mul_f32 %s, %s, %s' % (v(m), v(m), v(cq))]
    for r in range(4): L.append('v_fma_f32 %s, %s, %s, -%s' % (v(a + r), v(a + r), v(cq), v(m)))
    for r in range(4): L.append('v_exp_f32 %s, %s' % (v(a + r), v(a + r)))
    L.append('v_cvt_pk_bf16_f32 %s, %s, %s' % (v(a + 6), v(a), v(a + 1)))
    L.append('v_cvt_pk_bf16_f32 %s, %s, %s' % (v(a + 7), v(a + 2), v(a + 3)))
    own_first = VSLOT[t] < VSLOT[prev]
    po, pp = (a + 8, a + 10) if own_first else (a + 10, a + 8)
    L += ['v_and_b32 %s, %s, %s' % (v(po), v(AM), v(a + 6)),
          'v_and_b32 %s, %s, %s' % (v(po + 1), v(AM + 1), v(a + 7)),
          'v_xor_b32 %s, %s, %s' % (v(pp), v(po), v(a + 6)),
          'v_xor_b32 %s, %s, %s' % (v(pp + 1), v(po + 1), v(a + 7))]
    vb = min(VSLOT[t], VSLOT[prev])
    assert abs(VSLOT[t] - VSLOT[prev]) == 2
    L.append('v_mfma_f32_16x16x32_bf16 %s, %s, %s, 0' % (v(a + 4, 4), v(ONES, 4), v(a + 8, 4)))
    L.append('v_mfma_f32_16x16x32_bf16 %s, %s, %s, 0' % (v(a, 4), v(vb, 4), v(a + 8, 4)))
    L.append('v_rcp_f32 %s, %s' % (v(a + 4), v(a + 4)))
    for r in range(4): L.append('v_mul_f32 %s, %s, %s' % (v(a + r), v(a + 4), v(a + r)))
    L.append('v_cvt_pk_bf16_f32 %s, %s, %s' % (v(a + 8), v(a), v(a + 1)))
    L.append('v_cvt_pk_bf16_f32 %s, %s, %s' % (v(a + 9), v(a + 2), v(a + 3)))
    L += st2('buffer_store_dwordx2', v(a + 8, 2), v(vOst), 'ws', sOB[t])
    return L

def wo_dma(q0, q1):
    L = []
    for q in range(q0, q1):
        L.append('s_add_u32 m0, %s, %d' % (sM0W, LDS_Y + q * 1024))
        L.append('s_mov_b32 %s, %d' % (sT[2], q * 8192))
        L.append(T('buffer_load_dwordx4 %s, %s, %s offen lds' % (v(vDW1 if q & 1 else vDW0), srd(SWO), sT[2]), 'wo'))
    return L

PD = 3
def xread(seq):
    t, ks = divmod(seq, 16)
    if t == 4:
        base = TMP[1] if (ks & 1) == 0 else TMP[2]
        off = (ks >> 1) * 2048
    else:
        base = vXO if ks & 1 else vXE
        off = t * 16384 + (ks >> 1) * 2048
    return 'ds_read_b128 %s, %s offset:%d' % (v(XR + (seq % 4) * 4, 4), v(base), LDS_X + off)

def qkv_consts(a, bank):
    t0, t1, t2 = TMP
    a('v_mov_b32 %s, 0x%x' % (v(t0), BIG))
    for r in range(4): a('v_cndmask_b32 %s, %s, 0, %s' % (v(CM + r), v(t0), sp(sVAL[r])))
    a('v_mov_b32 %s, 0xffff' % v(t0))
    a('v_mov_b32 %s, 0xffff0000' % v(t1))
    for h in range(2):
        a('v_cndmask_b32 %s, 0, %s, %s' % (v(AM + h), v(t0), sp(sOWN[2 * h])))
        a('v_cndmask_b32 %s, 0, %s, %s' % (v(t2), v(t1), sp(sOWN[2 * h + 1])))
        a('v_or_b32 %s, %s, %s' % (v(AM + h), v(AM + h), v(t2)))
    for r in range(4): a('v_mov_b32 %s, 0x3f803f80' % v(ONES + r))

def cs_load(a, bank):
    t0, t1, t2 = TMP
    a('s_lshl_b32 %s, %s, 8' % (sT[0], sW))
    a('v_add_u32 %s, %s, %s' % (v(t0), sT[0], v(vS2)))
    a('v_add_u32 %s, %s, %s' % (v(t1), sT[0], v(vS1)))
    o = MISC_CS + bank * 1024
    a('ds_read_b128 %s, %s offset:%d' % (v(CSQ, 4), v(t0), o))
    a('ds_read_b128 %s, %s offset:%d' % (v(CSK, 4), v(t0), o + 64))
    a('ds_read_b32 %s, %s offset:%d' % (v(CSV), v(t1), o + 128))

def qkv_phase(a, bank):
    a.comment('==== QKV phase bank %d' % bank)
    cs_load(a, bank)
    a(waittag('x0'))
    a('s_barrier')
    for s in range(PD): a(xread(s))
    def G(t):
        acc = ACC[t & 1]
        M = []
        for ks in range(16):
            seq = t * 16 + ks
            nxt = seq + PD
            if nxt < 80:
                if nxt % 16 == 0:
                    nt = nxt // 16
                    if nt == 1: M += [waittag('x1', 'statw'), 's_barrier']
                    if nt == 2: M += [waittag('x2', 'x3'), 's_barrier']
                    if nt == 4: M += [waittag('xh', 'wo', 'statw'), 's_barrier']
                M.append(xread(nxt))
            x = v(XR + (seq % 4) * 4, 4)
            c = lambda o: '0' if ks == 0 else v(acc + o, 4)
            if t != 4:
                M.append('v_mfma_f32_16x16x32_bf16 %s, %s, %s, %s' % (v(acc, 4), wreg(bank, 0, ks), x, c(0)))
            M.append('v_mfma_f32_16x16x32_bf16 %s, %s, %s, %s' % (v(acc + 4, 4), wreg(bank, 1, ks), x, c(4)))
            M.append('v_mfma_f32_16x16x32_bf16 %s, %s, %s, %s' % (v(acc + 8, 4), x, wreg(bank, 2, ks), c(8)))
        return M
    def split_at_barrier(M):
        for i, m in enumerate(M):
            if isinstance(m, Ins) and m.kind == 'waittag': return M[:i], M[i:]
        return M, []
    F = ['s_lshl_b32 %s, %s, 6' % (sT[0], sW), 'v_add_u32 %s, %s, %s' % (v(TMP[0]), sT[0], v(vS1))]
    F += ['s_add_u32 %s, %s, %d' % (sT[1], sROW, 2 * 32768)] + xdma(2, SXS, sT[1], 'x2')
    F += stats_final(ST, None, None, TMP[0], 0, 80)
    F += ['s_add_u32 %s, %s, %d' % (sT[1], sROW, 3 * 32768)] + xdma(3, SXS, sT[1], 'x3')
    M1, M2 = split_at_barrier(G(0))
    a.drain(a.interleave(M1, F))
    F = P_reads(0)
    a.drain(a.interleave(M2, [delay(3)] + F))
    F = P_code(0) + wo_dma(0, 10) + P_reads(1)
    a.drain(a.interleave(G(1), F))
    F = P_code(1) + P_reads(2) + wo_dma(10, 13) + A_code(1, ACC[1]) + wo_dma(13, 16)
    F += ['v_and_b32 %s, 28, %s' % (v(TMP[1]), v(vFl)),
          'buffer_load_dword %s, %s, %s, %s offen offset:256 sc1' % (v(TMP[0]), v(TMP[1]), srd(SWS), sFLGN)]
    a.drain(a.interleave(G(2), F))
    M = G(3)
    M1, M2 = split_at_barrier(M)
    Ma, Mb = M1[:16], M1[16:]
    F = P_code(2) + P_reads(3)
    F = a.interleave(Ma, F, per=2.5)
    skip = label('skiph')
    a('s_cmp_lg_u32 %s, 0' % sSKIPH)
    a('s_cbranch_scc1 %s' % skip)
    a.begin_cond()
    poll(a, TMP[0], TMP[1], sFLGN, 256, sLAYER, first_loaded=True)
    a('buffer_load_dwordx2 %s, %s, %s, %s offen sc1' % (v(HST, 2), v(vSTld), srd(SWS), sHSTN))
    a('buffer_load_dwordx2 %s, %s, %s, %s offen offset:512 sc1' % (v(HST + 2, 2), v(vSTld), srd(SWS), sHSTN))
    a(xdma(4, SWS, sHALN, 'xh'))
    a.end_cond()
    a(skip + ':')
    F = F + A_code(2, ACC[0]) + ['v_add_u32 %s, 0x10000, %s' % (v(TMP[1]), v(vXE)), 'v_add_u32 %s, 0x10000, %s' % (v(TMP[2]), v(vXO))]
    F += stats_final(HST, None, None, vS1, 64, 144)
    a.drain(a.interleave(Mb, F))
    a.drain(a.interleave(M2, []))
    F = P_code(3) + P_reads(4) + A_code(3, ACC[1])
    a.drain(a.interleave(G(4), F))
    a(P_code(4))
    nz = label('nohz')
    a('s_cmp_lg_u32 %s, 0' % sBLK)
    a('s_cbranch_scc1 %s' % nz)
    a.begin_cond()
    for r in (KB, KB + 1, VP + 2, VP + 3): a('v_mov_b32 %s, 0' % v(r))
    a('v_mov_b32 %s, 0x%x' % (v(TMP[0]), BIG))
    for r in range(4): a('v_cndmask_b32 %s, %s, %s, %s' % (v(CM + r), v(TMP[0]), v(CM + r), sp(sOWN[r])))
    a.end_cond()
    a(nz + ':')
    a(A_code(0, ACC[0]))

def wo_phase(a):
    a.comment('==== Wo phase')
    OF = 34
    pool = [98 + 4 * i for i in range(7)]
    tflag = 126
    a('s_add_u32 %s, %s, 1' % (sLAYER, sLAYER))
    a('v_mov_b32 %s, %s' % (v(tflag), sLAYER))
    a('s_waitcnt vmcnt(0)')
    a(st2('buffer_store_dword', v(tflag), 'off', 'ws', sFLW))
    order = [(ks, ct) for ks in range(16) for ct in range(4)]
    regs = {}
    nxt = [0]
    def issue_reads():
        out = []
        while pool and nxt[0] < len(order):
            ks, ct = order[nxt[0]]; nxt[0] += 1
            r = pool.pop(0); regs[(ks, ct)] = r
            for u in range(2):
                out.append('ds_read_b64_tr_b16 %s, %s offset:%d' % (v(r + 2 * u, 2), v(vWT[ct]), ks * 4096 + u * 512))
        return out
    a(issue_reads())
    for i in range(1, 4): a('s_add_u32 %s, %s, %d' % (sT[i], sOB[0], i * 4096))
    poll(a, 127, vFl, sFLG, 0, sLAYER)
    for ks in range(16):
        so = sOB[0] if ks < 4 else sT[ks >> 2]
        a('buffer_load_dwordx4 %s, %s, %s, %s offen offset:%d sc1' % (v(OF + ks * 4, 4), v(vOld), srd(SWS), so, (ks & 3) * 1024))
    pend = []
    for (ks, ct) in order:
        r = regs[(ks, ct)]
        a('v_mfma_f32_16x16x32_bf16 %s, %s, %s, %s' % (v(XRES + ct * 4, 4), v(r, 4), v(OF + ks * 4, 4), v(XRES + ct * 4, 4)))
        pool.append(r)
        pend += issue_reads()
        for _ in range(2 if len(pend) <= 2 else 3):
            if pend: a(pend.pop(0))
    assert not pend
    PK = 98
    for ct in range(4):
        a('v_cvt_pk_bf16_f32 %s, %s, %s' % (v(PK + 2 * ct), v(XRES + 4 * ct), v(XRES + 4 * ct + 1)))
        a('v_cvt_pk_bf16_f32 %s, %s, %s' % (v(PK + 2 * ct + 1), v(XRES + 4 * ct + 2), v(XRES + 4 * ct + 3)))
    for pr in range(2):
        a('v_permlane16_swap_b32 %s, %s' % (v(PK + 4 * pr), v(PK + 4 * pr + 2)))
        a('v_permlane16_swap_b32 %s, %s' % (v(PK + 4 * pr + 1), v(PK + 4 * pr + 3)))
        a(st2('buffer_store_dwordx4', v(PK + 4 * pr, 4), v(vXst), 'out', sROW, pr * 64))
    cont = label('cont')
    a('s_cmp_lt_u32 %s, 4' % sLAYER)
    a('s_cbranch_scc1 %s' % cont)
    a('s_endpgm')
    a(cont + ':')
    s, q, one = 106, 107, 108
    a('v_mov_b32 %s, 0' % v(s)); a('v_mov_b32 %s, 0' % v(q)); a('v_mov_b32 %s, 0x3f803f80' % v(one))
    for i in range(8):
        a('v_dot2c_f32_bf16 %s, %s, %s' % (v(s), v(PK + i), v(one)))
        a('v_dot2c_f32_bf16 %s, %s, %s' % (v(q), v(PK + i), v(PK + i)))
    a('v_permlane32_swap_b32 %s, %s' % (v(s), v(q)))
    a('v_add_f32 %s, %s, %s' % (v(s), v(s), v(q)))
    a('v_mov_b32 %s, %s' % (v(q), v(s)))
    a('v_permlane16_swap_b32 %s, %s' % (v(q), v(s)))
    a('v_add_f32 %s, %s, %s' % (v(s), v(s), v(q)))
    a(st2('buffer_store_dword', v(s), v(vSTst), 'ws', sST))
    a('s_waitcnt vmcnt(0)')
    a(st2('buffer_store_dword', v(tflag), 'off', 'ws', sFLW, 128))
    nh = label('nohalo')
    a('s_cmp_lg_u32 %s, 3' % sW)
    a('s_cbranch_scc1 %s' % nh)
    a.begin_cond()
    for pr in range(2):
        a('buffer_store_dwordx4 %s, %s, %s, %s offen offset:%d sc1' % (v(PK + 4 * pr, 4), v(vXst), srd(SWS), sHAL, pr * 64))
    a('buffer_store_dword %s, %s, %s, %s offen sc1' % (v(s), v(vSTst), srd(SWS), sHST))
    a('s_lshl_b32 %s, %s, 2' % (sT[0], sJ))
    a('s_add_u32 %s, %s, %s' % (sT[0], sT[0], sFLG))
    a('s_waitcnt vmcnt(0)')
    a('buffer_store_dword %s, off, %s, %s offset:256 sc1' % (v(tflag), srd(SWS), sT[0]))
    a.end_cond()
    a(nh + ':')
    a.fence()
    a('s_add_u32 %s, %s, %d' % (sHAL, sHAL, 512 << 10))
    a('s_add_u32 %s, %s, %d' % (sHST, sHST, 128 << 10))
    a('s_add_u32 %s, %s, %d' % (sHALN, sHALN, 512 << 10))
    a('s_add_u32 %s, %s, %d' % (sHSTN, sHSTN, 128 << 10))
    a('s_cmp_eq_u32 %s, 0' % sBLK)
    a('s_cselect_b32 %s, 1, 0' % sSKIPH)
    a('s_mov_b64 %s, %s' % (sp(SXS), sp(SOUT)))
    a('s_bitcmp1_b32 %s, 0' % sLAYER)
    a('s_cselect_b64 %s, %s, %s' % (sp(SWO), sp(SWOB), sp(SWOA)))
    qkv_consts(a, None)
    a('s_add_u32 %s, %s, %d' % (sT[1], sROW, 32768))
    poll(a, 127, vFl, sFLG, 128, sLAYER)

def phase_start(a):
    a('buffer_load_dwordx2 %s, %s, %s, %s offen sc1' % (v(ST, 2), v(vSTld), srd(SWS), sST))
    a('buffer_load_dwordx2 %s, %s, %s, %s offen offset:512 sc1' % (v(ST + 2, 2), v(vSTld), srd(SWS), sST))
    a(xdma(0, SXS, sROW, 'x0'))
    a(xdma(1, SXS, sT[1], 'x1'))

def prologue(a):
    a('s_cmp_ge_u32 s2, 0x100')
    a('s_cbranch_scc0 L_go')
    a('s_endpgm')
    a('L_go:')
    for n, off in ((SX0, 0), (SWQA, 8), (SWOA, 16), (SWQB, 32), (SWOB, 40), (SOUT, 48), (SDBG, 56), (SWS, 64)):
        a('s_load_dwordx2 %s, s[0:1], %d' % (sp(n), off))
    vL, vR, vG, vA, vB, vC = 34, 35, 36, 37, 38, 39
    a('v_lshrrev_b32 %s, 6, v0' % v(vA))
    a('v_and_b32 %s, 63, v0' % v(vL))
    a('v_readfirstlane_b32 %s, %s' % (sW, v(vA)))
    a('v_and_b32 %s, 15, %s' % (v(vR), v(vL)))
    a('v_lshrrev_b32 %s, 4, %s' % (v(vG), v(vL)))
    if OPT['xmap']:
        a('s_and_b32 %s, s2, 7' % sJ)
        a('s_lshr_b32 %s, s2, 3' % sCL)
    else:
        a('s_and_b32 %s, s2, 7' % sT[0])
        a('s_lshr_b32 %s, s2, 3' % sT[1])
        a('s_and_b32 %s, %s, 7' % (sJ, sT[1]))
        a('s_lshr_b32 %s, %s, 3' % (sT[1], sT[1]))
        a('s_lshl_b32 %s, %s, 2' % (sCL, sT[0]))
        a('s_add_u32 %s, %s, %s' % (sCL, sCL, sT[1]))
    a('s_and_b32 %s, %s, 15' % (sBLK, sCL))
    a('s_lshr_b32 %s, %s, 4' % (sT[0], sCL))
    a('s_lshl_b32 %s, %s, 10' % (sT[0], sT[0]))
    a('s_lshl_b32 %s, %s, 17' % (sROW, sBLK))
    a('s_add_u32 %s, %s, %s' % (sROW, sROW, sT[0]))
    a('s_cmp_eq_u32 %s, 0' % sBLK)
    a('s_cselect_b32 %s, 0, 1' % sT[1])
    a('s_sub_u32 %s, %s, %s' % (sT[2], sCL, sT[1]))
    a('s_lshl_b32 %s, %s, 9' % (sFLG, sCL))
    a('s_add_u32 %s, %s, %d' % (sFLG, sFLG, WS_FLAG))
    a('s_lshl_b32 %s, %s, 9' % (sFLGN, sT[2]))
    a('s_add_u32 %s, %s, %d' % (sFLGN, sFLGN, WS_FLAG))
    a('s_lshl_b32 %s, %s, 15' % (sHAL, sBLK))
    a('s_add_u32 %s, %s, %s' % (sHAL, sHAL, sT[0]))
    a('s_lshl_b32 %s, %s, 15' % (sT[3], sT[1]))
    a('s_sub_u32 %s, %s, %s' % (sHALN, sHAL, sT[3]))
    a('s_add_u32 %s, %s, %d' % (sHALN, sHALN, WS_HX - (512 << 10)))
    a('s_add_u32 %s, %s, %d' % (sHAL, sHAL, WS_HX - 3 * 32768))
    a('s_sub_u32 %s, %s, %s' % (sT[5], sROW, sT[3]))
    a('s_lshl_b32 %s, %s, 12' % (sST, sCL))
    a('s_add_u32 %s, %s, %d' % (sHST, sST, WS_HST))
    a('s_add_u32 %s, %s, %d' % (sST, sST, WS_STAT))
    a('s_lshl_b32 %s, %s, 12' % (sHSTN, sT[2]))
    a('s_lshl_b32 %s, %s, 7' % (sT[3], sW))
    a('s_sub_u32 %s, %s, %s' % (sHSTN, sHSTN, sT[3]))
    a('s_add_u32 %s, %s, %d' % (sHSTN, sHSTN, WS_HST + 384 - (128 << 10)))
    a('s_lshl_b32 %s, %s, 16' % (sOB[0], sCL))
    for i in range(1, 4): a('s_add_u32 %s, %s, %d' % (sOB[i], sOB[0], i * 16384))
    a('s_lshl_b32 %s, %s, 12' % (sM0X, sW))
    a('s_lshl_b32 %s, %s, 14' % (sM0W, sW))
    a('s_lshl_b32 %s, %s, 3' % (sT[4], sT[2]))
    a('s_lshl_b32 %s, %s, 2' % (sT[3], sJ))
    a('s_add_u32 %s, %s, %s' % (sT[3], sT[3], sW))
    a('s_lshl_b32 %s, %s, 2' % (sT[3], sT[3]))
    a('s_add_u32 %s, %s, %s' % (sFLW, sFLG, sT[3]))
    a('s_mov_b32 %s, 0' % sLAYER)
    a('s_mov_b32 %s, 1' % sSKIPH)
    for n, size in ((SX0, 2 << 20), (SWQA, 512 * 3072), (SWOA, 512 * 1024), (SWQB, 512 * 3072), (SWOB, 512 * 1024),
                    (SOUT, 2 << 20), (SDBG, 256), (SWS, WS_SIZE), (SWO, 512 * 1024), (SXS, 2 << 20)):
        a('s_mov_b32 s%d, 0x%x' % (n + 2, size))
        a('s_mov_b32 s%d, 0x20000' % (n + 3))
    for n in (SOUTF, SOUTS, SWSF, SWSS):
        a('s_mov_b32 s%d, 0x20000' % (n + 3))
    sJ128 = sT[0]
    a('s_lshl_b32 %s, %s, 7' % (sJ128, sJ))
    a('v_lshrrev_b32 %s, 3, %s' % (v(vA), v(vL)))
    a('v_and_b32 %s, 7, %s' % (v(vB), v(vL)))
    a('v_xor_b32 %s, %s, %s' % (v(vC), v(vB), v(vG)))
    a('v_lshlrev_b32 %s, 4, %s' % (v(vC), v(vC)))
    a('v_lshl_add_u32 %s, %s, 11, %s' % (v(vDX0), v(vA), v(vC)))
    a('s_lshl_b32 %s, %s, 8' % (sT[3], sW))
    a('v_add_u32 %s, %s, %s' % (v(vDX0), sT[3], v(vDX0)))
    a('v_xor_b32 %s, 64, %s' % (v(vDX1), v(vDX0)))
    a('v_add_u32 %s, 0x4000, %s' % (v(vDX1), v(vDX1)))
    vSW = 40
    a('v_and_b32 %s, 1, %s' % (v(vC), v(vG)))
    a('v_lshlrev_b32 %s, 1, %s' % (v(vC), v(vC)))
    a('v_xor_b32 %s, %s, %s' % (v(vC), v(vC), v(vB)))
    a('v_lshl_add_u32 %s, %s, 4, %s' % (v(vSW), v(vC), sJ128))
    vQ0, vQ1 = 41, 42
    a('s_lshl_b32 %s, %s, 4' % (sT[3], sW))
    a('v_add_u32 %s, %s, %s' % (v(vC), sT[3], v(vA)))
    a('v_mul_u32_u24 %s, 0xc00, %s' % (v(vC), v(vC)))
    a('v_add_u32 %s, %s, %s' % (v(vQ0), v(vC), v(vSW)))
    a('v_xor_b32 %s, 64, %s' % (v(vQ1), v(vQ0)))
    a('v_add_u32 %s, %d, %s' % (v(vQ1), 8 * 3072, v(vQ1)))
    a('s_waitcnt lgkmcnt(0)')
    a('s_mov_b64 %s, %s' % (sp(SXS), sp(SX0)))
    a('s_mov_b64 %s, %s' % (sp(SWO), sp(SWOA)))
    for n in (SOUTF, SOUTS): a('s_mov_b64 %s, %s' % (sp(n), sp(SOUT)))
    for n in (SWSF, SWSS): a('s_mov_b64 %s, %s' % (sp(n), sp(SWS)))
    vZ = 43
    a('v_mov_b32 %s, 0' % v(vZ))
    a('s_lshl_b32 %s, %s, 2' % (sT[3], sJ))
    a('s_add_u32 %s, %s, %s' % (sT[3], sT[3], sFLG))
    a('buffer_store_dword %s, off, %s, %s sc1' % (v(vZ), srd(SWS), sFLW))
    a('buffer_store_dword %s, off, %s, %s offset:128 sc1' % (v(vZ), srd(SWS), sFLW))
    a('buffer_store_dword %s, off, %s, %s offset:256 sc1' % (v(vZ), srd(SWS), sT[3]))
    sMQ = sT[1]
    a('s_lshl_b32 %s, %s, 11' % (sMQ, sW))
    def wchunk(c):
        L = []
        bank, cc = divmod(c, 8)
        buf = LDS_Y + (c % 3) * 24576
        L.append('s_mov_b32 %s, %d' % (sT[2], cc * 64 * 3072))
        for part in range(3):
            for e in range(2):
                L.append('s_add_u32 m0, %s, %d' % (sMQ, buf + part * 7168 + e * 1024))
                L.append(T('buffer_load_dwordx4 %s, %s, %s offen offset:%d lds' % (v(vQ1 if e else vQ0), srd(SWQB if bank else SWQA), sT[2], part * 1024), 'wc%d' % c))
        return L
    a(wchunk(0))
    for t in range(4):
        a('s_add_u32 %s, %s, %d' % (sT[3], sROW, t * 32768))
        a(xdma(t, SX0, sT[3], 'xp'))
    a(xdma(4, SX0, sT[5], 'xp'))
    a(wchunk(1)); a(wchunk(2))
    a('v_lshrrev_b32 %s, 1, %s' % (v(vC), v(vR)))
    a('v_xor_b32 %s, %s, %s' % (v(vC), v(vC), v(vG)))
    a('v_lshlrev_b32 %s, 4, %s' % (v(vC), v(vC)))
    a('v_lshl_add_u32 %s, %s, 7, %s' % (v(vXE), v(vR), v(vC)))
    a('v_xor_b32 %s, 64, %s' % (v(vXO), v(vXE)))
    a('s_lshl_b32 %s, %s, 17' % (sT[3], sW))
    a('v_lshl_add_u32 %s, %s, 10, %s' % (v(vDW0), v(vA), v(vSW)))
    a('v_add_u32 %s, %s, %s' % (v(vDW0), sT[3], v(vDW0)))
    a('v_xor_b32 %s, 64, %s' % (v(vDW1), v(vDW0)))
    vF, vE = 44, 45
    a('v_bfe_u32 %s, %s, 2, 2' % (v(vB), v(vL)))
    a('v_lshl_add_u32 %s, %s, 3, %s' % (v(vC), v(vG), v(vB)))
    a('v_lshlrev_b32 %s, 7, %s' % (v(vC), v(vC)))
    a('v_and_b32 %s, 3, %s' % (v(vE), v(vL)))
    a('v_lshl_add_u32 %s, %s, 3, %s' % (v(vC), v(vE), v(vC)))
    a('v_add_u32 %s, %d, %s' % (v(vC), LDS_Y, v(vC)))
    a('v_bfe_u32 %s, %s, 3, 2' % (v(vF), v(vL)))
    for t in range(4):
        a('v_xor_b32 %s, %d, %s' % (v(vE), t, v(vF)))
        a('v_lshl_add_u32 %s, %s, 5, %s' % (v(vWT[t]), v(vE), v(vC)))
    vTQ0, vTQ1 = 46, 47
    a('v_xor_b32 %s, %s, %s' % (v(vE), sW, v(vF)))
    a('v_lshl_add_u32 %s, %s, 5, %s' % (v(vTQ0), v(vE), v(vC)))
    a('v_add_u32 %s, %d, %s' % (v(vTQ1), 2 * 24576, v(vTQ0)))
    a('s_lshl_b32 %s, %s, 2' % (sT[3], sJ))
    a('s_add_u32 %s, %s, %s' % (sT[3], sT[3], sW))
    a('s_lshl_b32 %s, %s, 9' % (sT[3], sT[3]))
    a('v_lshrrev_b32 %s, 1, %s' % (v(vB), v(vG)))
    a('v_and_b32 %s, 1, %s' % (v(vE), v(vG)))
    a('v_lshl_add_u32 %s, %s, 8, %s' % (v(vC), v(vB), sT[3]))
    a('v_lshl_add_u32 %s, %s, 4, %s' % (v(vC), v(vR), v(vC)))
    a('v_lshl_add_u32 %s, %s, 3, %s' % (v(vOst), v(vE), v(vC)))
    a('v_lshl_add_u32 %s, %s, 4, %s' % (v(vOld), v(vL), sM0W))
    a('s_lshl_b32 %s, %s, 15' % (sT[3], sW))
    a('s_add_u32 %s, %s, %s' % (sT[3], sT[3], sJ128))
    a('v_lshl_add_u32 %s, %s, 11, %s' % (v(vC), v(vR), sT[3]))
    vXb = 48
    a('v_lshl_add_u32 %s, %s, 3, %s' % (v(vXb), v(vG), v(vC)))
    a('v_lshl_add_u32 %s, %s, 5, %s' % (v(vC), v(vE), v(vC)))
    a('v_lshl_add_u32 %s, %s, 4, %s' % (v(vXst), v(vB), v(vC)))
    XL = 50
    for ct in range(4):
        a('buffer_load_dwordx2 %s, %s, %s, %s offen offset:%d' % (v(XL + 2 * ct, 2), v(vXb), srd(SX0), sROW, ct * 32))
    a('s_lshl_b32 %s, %s, 7' % (sT[3], sW))
    a('v_lshl_add_u32 %s, %s, 3, %s' % (v(vC), v(vR), sT[3]))
    a('v_lshl_add_u32 %s, %s, 10, %s' % (v(vSTld), v(vG), v(vC)))
    a('s_lshl_b32 %s, %s, 9' % (sT[3], sJ))
    a('v_lshl_add_u32 %s, %s, 2, %s' % (v(vC), v(vB), v(vC)))
    a('v_add_u32 %s, %s, %s' % (v(vSTst), sT[3], v(vC)))
    a('v_and_b32 %s, 31, %s' % (v(vC), v(vL)))
    a('v_lshlrev_b32 %s, 2, %s' % (v(vFl), v(vC)))
    a('v_lshlrev_b32 %s, 2, %s' % (v(vC), v(vR)))
    a('v_add_u32 %s, %d, %s' % (v(vS1), LDS_MISC, v(vC)))
    a('v_lshlrev_b32 %s, 4, %s' % (v(vC), v(vG)))
    a('v_add_u32 %s, %d, %s' % (v(vS2), LDS_MISC, v(vC)))
    for r in range(4):
        a('v_lshl_add_u32 %s, %s, 2, %d' % (v(vC), v(vG), r))
        a('v_cmp_le_u32 %s, %s, %s' % (sp(sOWN[r]), v(vC), v(vR)))
        a('v_sub_u32 %s, %s, %s' % (v(vC), v(vR), v(vC)))
        a('v_and_b32 %s, 15, %s' % (v(vC), v(vC)))
        a('v_cmp_ge_u32 %s, 7, %s' % (sp(sVAL[r]), v(vC)))
    vHS, vHA = 60, 61
    a('s_getreg_b32 %s, hwreg(HW_REG_XCC_ID, 0, 4)' % sT[3])
    a('s_mul_i32 %s, %s, %s' % (sT[5], sT[3], sT[3]))
    a('s_lshl_b32 %s, %s, 16' % (sT[5], sT[5]))
    a('s_lshl_b32 %s, %s, 8' % (sT[3], sT[3]))
    a('s_add_u32 %s, %s, %s' % (sT[5], sT[5], sT[3]))
    a('s_add_u32 %s, %s, 1' % (sT[5], sT[5]))
    a('v_mov_b32 %s, %s' % (v(vHS), sT[5]))
    a('s_lshl_b32 %s, %s, 3' % (sT[3], sCL))
    a('v_mov_b32 %s, %s' % (v(vHA), sT[3]))
    a('v_mov_b32 %s, %s' % (v(vC), sT[4]))
    a('v_cmp_eq_u32 vcc, 0, %s' % v(vL))
    a('v_cndmask_b32 %s, %s, %s, vcc' % (v(vHA), v(vC), v(vHA)))
    qkv_consts(a, 0)
    CSA = 62
    FR = 100
    for c in range(16):
        bank, cc = divmod(c, 8)
        if c == 0: a(waittag('wc0', 'xp'))
        else: a(waittag('wc%d' % c))
        a('s_barrier')
        if c == 0:
            nk = label('nohs')
            a('s_cmp_lg_u32 %s, 0' % sW)
            a('s_cbranch_scc1 %s' % nk)
            a.begin_cond()
            a('s_mov_b64 exec, 1')
            a('buffer_atomic_add %s, %s, %s, 0 offen sc1' % (v(vHS), v(vHA), srd(SDBG)))
            a('s_mov_b64 exec, -1')
            a.end_cond()
            a(nk + ':')
        if c >= 1 and c + 2 < 16: a(wchunk(c + 2))
        base = vTQ1 if c % 3 == 2 else vTQ0
        boff = (c % 3) * 24576 if c % 3 != 2 else 0
        for ksl in range(2):
            for part in range(3):
                for u in range(2):
                    a('ds_read_b64_tr_b16 %s, %s offset:%d' % (wreg(bank, part, cc * 2 + ksl, 2 * u, 2), v(base), boff + part * 8192 + ksl * 4096 + u * 512))
        if c in (0, 1):
            dst = ST if c == 0 else HST
            if c == 0:
                a('v_add_u32 %s, %s, %s' % (v(TMP[1]), sM0W, v(vXE)))
                a('v_add_u32 %s, %s, %s' % (v(TMP[2]), sM0W, v(vXO)))
            else:
                a('v_add_u32 %s, 0x10000, %s' % (v(TMP[1]), v(vXE)))
                a('v_add_u32 %s, 0x10000, %s' % (v(TMP[2]), v(vXO)))
            for i in range(4): a('v_mov_b32 %s, 0' % v(dst + i))
            for k4 in range(4):
                for i in range(4):
                    ks = k4 * 4 + i
                    a('ds_read_b128 %s, %s offset:%d' % (v(FR + 4 * i, 4), v(TMP[2] if ks & 1 else TMP[1]), LDS_X + (ks >> 1) * 2048))
                for i in range(16):
                    a('v_dot2c_f32_bf16 %s, %s, %s' % (v(dst + (i & 1) * 2), v(FR + i), v(ONES)))
                    a('v_dot2c_f32_bf16 %s, %s, %s' % (v(dst + 1 + (i & 1) * 2), v(FR + i), v(FR + i)))
        if c == 2:
            for ct in range(4):
                for h in range(2):
                    a('v_lshlrev_b32 %s, 16, %s' % (v(XRES + 4 * ct + 2 * h), v(XL + 2 * ct + h)))
                    a('v_and_b32 %s, 0xffff0000, %s' % (v(XRES + 4 * ct + 2 * h + 1), v(XL + 2 * ct + h)))
        for ksl in range(2):
            ks = cc * 2 + ksl
            cc_ = lambda o: '0' if ks == 0 else v(CSA + o, 4)
            a('v_mfma_f32_16x16x32_bf16 %s, %s, %s, %s' % (v(CSA, 4), wreg(bank, 0, ks), v(ONES, 4), cc_(0)))
            a('v_mfma_f32_16x16x32_bf16 %s, %s, %s, %s' % (v(CSA + 4, 4), wreg(bank, 1, ks), v(ONES, 4), cc_(4)))
            a('v_mfma_f32_16x16x32_bf16 %s, %s, %s, %s' % (v(CSA + 8, 4), v(ONES, 4), wreg(bank, 2, ks), cc_(8)))
        if cc == 7:
            a('s_lshl_b32 %s, %s, 8' % (sT[0], sW))
            a('v_add_u32 %s, %s, %s' % (v(TMP[1]), sT[0], v(vS2)))
            a('v_add_u32 %s, %s, %s' % (v(TMP[2]), sT[0], v(vS1)))
            o = MISC_CS + bank * 1024
            a('ds_write_b128 %s, %s offset:%d' % (v(TMP[1]), v(CSA, 4), o))
            a('ds_write_b128 %s, %s offset:%d' % (v(TMP[1]), v(CSA + 4, 4), o + 64))
            a('ds_write_b32 %s, %s offset:%d' % (v(TMP[2]), v(CSA + 8), o + 128))
        a('s_waitcnt lgkmcnt(0)')
    lp, dn = label('hs'), label('hsd')
    a('s_mov_b32 %s, 0' % sSPIN)
    a(lp + ':')
    a('buffer_load_dword %s, %s, %s, 0 offen sc1' % (v(vHS), v(vHA), srd(SDBG)))
    a('s_waitcnt vmcnt(0)')
    a('v_and_b32 %s, 15, %s' % (v(vC), v(vHS)))
    a('v_cmp_ne_u32 vcc, 8, %s' % v(vC))
    a('s_cbranch_vccz %s' % dn)
    a('s_add_u32 %s, %s, 1' % (sSPIN, sSPIN))
    a('s_cmp_lt_u32 %s, %d' % (sSPIN, SPIN_LIMIT))
    a('s_cbranch_scc1 %s' % lp)
    a('s_endpgm')
    a(dn + ':')
    a('v_readfirstlane_b32 %s, %s' % (sT[0], v(vHS)))
    a('s_lshl_b32 %s, %s, 3' % (sT[5], sT[5]))
    a('s_nop 2')
    if OPT['force_safe']: a('s_cmp_eq_u32 %s, 0' % sT[0])
    else: a('s_cmp_eq_u32 %s, %s' % (sT[0], sT[5]))
    a('s_cselect_b32 s%d, 0x%x, 0' % (SOUTF + 2, 2 << 20))
    a('s_cselect_b32 s%d, 0, 0x%x' % (SOUTS + 2, 2 << 20))
    a('s_cselect_b32 s%d, 0x%x, 0' % (SWSF + 2, WS_SIZE))
    a('s_cselect_b32 s%d, 0, 0x%x' % (SWSS + 2, WS_SIZE))
    a('s_waitcnt vmcnt(0) lgkmcnt(0)')
    a.fence()

def build():
    segs = {}
    def seg(name, fn, st=None):
        a = Asm()
        if st is not None: a.st = st.clone()
        fn(a)
        segs[name] = a
        return a.st
    seg('pro', prologue)
    s1 = seg('ps', lambda a: (phase_start(a), a('s_bitcmp1_b32 %s, 0' % sLAYER), a('s_cbranch_scc0 L_qkvA'), a('s_branch L_qkvB')))
    s2 = seg('qa', lambda a: (a('L_qkvA:'), qkv_phase(a, 0), a('s_branch L_wo')), s1)
    s2b = seg('qb', lambda a: (a('L_qkvB:'), qkv_phase(a, 1)), s1)
    seg('wo', lambda a: (a('L_wo:'), wo_phase(a)), s2b)
    body = []
    for n in ('pro', 'qa', 'qb', 'wo', 'ps'):
        body += segs[n].lines
        sys.stderr.write('seg %s: %d lines, %d slots\n' % (n, len(segs[n].lines), segs[n].nslots))
    return body

HEAD = open(os.path.join(os.path.dirname(os.path.abspath(__file__)), '..', 'cdna_kernels', NAME + '.s.ref')).read().split('\n')
def main():
    out = []
    for l in HEAD:
        if l.startswith('; @launch'):
            out.append('; @launch grid=(256,1,1) block=(256,1,1) lds=%d' % LDS_TOTAL); break
        out.append(l)
    out += ['.amdgcn_target "amdgcn-amd-amdhsa--gfx950"', '.text', '.globl %s_kernel' % NAME, '.p2align 8',
            '.type %s_kernel,@function' % NAME, '%s_kernel:' % NAME]
    out += build()
    out += ['    s_endpgm', '.section .rodata,"a"', '.p2align 6', '.amdhsa_kernel %s_kernel' % NAME,
            '  .amdhsa_next_free_vgpr 512', '  .amdhsa_next_free_sgpr 102', '  .amdhsa_accum_offset 256',
            '  .amdhsa_group_segment_fixed_size 0', '  .amdhsa_kernarg_size 72', '  .amdhsa_user_sgpr_count 2',
            '  .amdhsa_user_sgpr_kernarg_segment_ptr 1', '  .amdhsa_system_sgpr_workgroup_id_x 1',
            '  .amdhsa_float_denorm_mode_32 3', '.end_amdhsa_kernel', '']
    open(sys.argv[1], 'w').write('\n'.join(out))
main()
```
